```python
import torch

def _softmax(x, axis=-1):
    return torch.softmax(x, dim=axis)
def _gelu(x):
    return torch.nn.functional.gelu(x, approximate="tanh")
def _silu(x):
    return torch.nn.functional.silu(x)
def _sigmoid(x):
    return torch.sigmoid(x)
def _layernorm(x, axis=-1, eps=1e-5):
    m = x.mean(dim=axis, keepdim=True)
    v = x.var(dim=axis, keepdim=True, unbiased=False)
    return (x - m) / torch.sqrt(v + eps)
def _scatter_add(tgt, idx, src, axis=0):
    return tgt.clone().index_add_(axis, idx, src)
def _segment_sum(src, seg, n):
    out = torch.zeros((n,) + src.shape[1:], dtype=src.dtype)
    return out.index_add_(0, seg, src)
def _pad(x, pw):
    flat = tuple(v for pair in reversed(pw) for v in pair)
    return torch.nn.functional.pad(x, flat)

kernel_name = 'standalone__gqa_block_cached__near_ridge'

def setup_inputs():

    _w = (lambda a: (lambda t: t.to(torch.bfloat16) if t.is_floating_point() else t)(torch.as_tensor(a)))
    B, Sq, D = 8, 96, 448
    Hq, Hkv, Sk, Dh = 16, 8, 1024, 256
    assert Hq % Hkv == 0, (Hq, Hkv)
    return {
        "x": _w((lambda *s: torch.randn(*s, dtype=torch.bfloat16) * 0.8)(B, Sq, D)),
        "k_cache": _w((lambda *s: torch.randn(*s, dtype=torch.bfloat16) * 0.8)(B, Hkv, Sk, Dh)),
        "v_cache": _w((lambda *s: torch.randn(*s, dtype=torch.bfloat16) * 0.05)(B, Hkv, Sk, Dh)),
        "wq": _w((lambda *s: torch.randn(*s, dtype=torch.bfloat16) * 0.8)(D, Hq * Dh) * (D ** -0.5)),
        "wo": _w((lambda *s: torch.randn(*s, dtype=torch.bfloat16) * 0.05)(Hq * Dh, D) * ((Hq * Dh) ** -0.5)),
    }

def reference(x, k_cache, v_cache, wq, wo):
    B, Sq, D = x.shape
    Hq, Dh = 16, 256
    Hkv = k_cache.shape[1]
    rep = Hq // Hkv
    q = (lambda x, *d: x.permute(*d))((x @ wq).reshape(B, Sq, Hq, Dh), 0, 2, 1, 3)
    k = (lambda x, n, axis: torch.repeat_interleave(x, n, dim=axis))(k_cache, rep, axis=1)
    v = (lambda x, n, axis: torch.repeat_interleave(x, n, dim=axis))(v_cache, rep, axis=1)
    scores = torch.einsum("bhqd,bhkd->bhqk", q, k) * (Dh ** -0.5)
    p = _softmax(scores, axis=-1)
    o = torch.einsum("bhqk,bhkd->bhqd", p, v)
    return (lambda x, *d: x.permute(*d))(o, 0, 2, 1, 3).reshape(B, Sq, Hq * Dh) @ wo
```

```python
class Asm:
    def __init__(self):
        self.L = []
    def __call__(self, s):
        for line in s.split("\n"):
            line = line.strip()
            if line:
                self.L.append(line if line.endswith(":") or line.startswith(".") or line.startswith(";") else "    " + line)
    def text(self):
        return "\n".join(self.L) + "\n"

def vr(a, n=1, p="v"):
    return f"{p}{a}" if n == 1 else f"{p}[{a}:{a+n-1}]"
def ar(a, n=1): return vr(a, n, "a")
def sr(a, n=1): return vr(a, n, "s")

def kernel_begin(A, name):
    A(f".globl {name}\n.p2align 8\n.type {name},@function\n{name}:")

def descriptor(A, name, vgpr, accum, sgpr=102):
    A(f".amdhsa_kernel {name}")
    A(f".amdhsa_next_free_vgpr {vgpr}\n.amdhsa_next_free_sgpr {sgpr}\n.amdhsa_accum_offset {accum}")
    A(".amdhsa_group_segment_fixed_size 0\n.amdhsa_kernarg_size 64\n.amdhsa_user_sgpr_count 2")
    A(".amdhsa_user_sgpr_kernarg_segment_ptr 1\n.amdhsa_system_sgpr_workgroup_id_x 1")
    A(".end_amdhsa_kernel")

def srd(A, d, base, nbytes):
    A(f"s_mov_b32 s{d}, s{base}\ns_mov_b32 s{d+1}, s{base+1}\ns_mov_b32 s{d+2}, {nbytes}\ns_mov_b32 s{d+3}, 0x20000")

HEADER = """; Kernarg layout for this problem (64 bytes, ptrs only, base s[0:1]):
"""
X_BYTES = 8*96*448*2
KV_BYTES = 8*8*1024*256*2
W_BYTES = 448*4096*2
WS_BYTES = 268435456
```

```python
import sys, math
sys.path.insert(0, "tools")
from asmlib import *
MF = "v_mfma_f32_16x16x32_bf16"
def attn_kernel(A):
    name = "attn0_kernel"
    kernel_begin(A, name)
    A("s_cmp_ge_u32 s2, 768\ns_cbranch_scc1 A_end")
    A("s_load_dwordx8 s[4:11], s[0:1], 0")
    A("s_load_dwordx2 s[12:13], s[0:1], 56")
    A("s_mul_hi_u32 s40, s2, 0x2AAAAAAB")
    A("s_mul_i32 s41, s40, 6\ns_sub_u32 s41, s2, s41")
    A("s_lshr_b32 s42, s40, 4")
    A("s_and_b32 s43, s40, 15")
    A("s_waitcnt lgkmcnt(0)")
    srd(A, 16, 4, X_BYTES); srd(A, 20, 6, KV_BYTES); srd(A, 24, 8, KV_BYTES); srd(A, 28, 10, W_BYTES); srd(A, 32, 12, WS_BYTES)
    A("v_and_b32 v1, 15, v0\nv_lshrrev_b32 v2, 4, v0")
    A("s_mul_i32 s44, s42, 96\ns_lshl_b32 s45, s41, 4\ns_add_u32 s44, s44, s45")
    A("v_add_u32 v3, s44, v1")
    A("v_mul_u32_u24 v4, 896, v3")
    A("v_lshl_add_u32 v4, v2, 4, v4")
    XB = 8
    for t in range(14):
        A(f"buffer_load_dwordx4 {vr(XB+4*t,4)}, v4, s[16:19], 0 offen offset:{t*64}")
    A("v_lshrrev_b32 v5, 5, v0\nv_and_b32 v6, 31, v0\nv_lshlrev_b32 v6, 4, v6")
    A("v_lshl_add_u32 v7, v5, 13, v6")
    A("v_lshl_add_u32 v6, v5, 9, v6")
    A("v_lshrrev_b32 v64, 2, v1\nv_and_b32 v65, 3, v1")
    A("v_lshl_add_u32 v66, v2, 3, v64")
    A("v_lshlrev_b32 v66, 9, v66")
    A("v_lshl_add_u32 v67, v65, 3, v66")
    A("v_lshl_add_u32 v66, v65, 4, v66")
    QA = 128
    for i in range(64): A(f"v_mov_b32 v{QA+i}, 0")
    A("s_lshl_b32 s46, s43, 9")
    for t in range(14):
        for i in range(16):
            A(f"s_mov_b32 m0, {i*1024}")
            A(f"s_add_u32 s47, s46, {(t*32+2*i)*8192}")
            A(f"buffer_load_dwordx4 v7, s[28:31], s47 offen lds")
        A("s_waitcnt vmcnt(0)")
        for mt in range(16):
            u, tp = mt >> 1, mt & 1
            off = u*64 + tp*8
            A(f"ds_read_b64_tr_b16 v[68:69], v66 offset:{off}")
            A(f"ds_read_b64_tr_b16 v[70:71], v66 offset:{off+4*512}")
            A("s_waitcnt lgkmcnt(0)")
            A(f"{MF} {vr(QA+4*mt,4)}, v[68:71], {vr(XB+4*t,4)}, {vr(QA+4*mt,4)}")
    A("s_nop 15")
    QB = 8
    for u in range(8):
        for j in range(4):
            A(f"v_cvt_pk_bf16_f32 v{QB+4*u+j}, v{QA+8*u+2*j}, v{QA+8*u+2*j+1}")
    A("s_nop 4")
    for i in range(64): A(f"v_mov_b32 v{QA+i}, 0")
    A("v_mov_b32 v72, 0xff800000\nv_mov_b32 v73, 0")
    A("v_lshl_add_u32 v74, v64, 3, v65")
    A("v_lshlrev_b32 v74, 9, v74")
    A("v_lshl_add_u32 v74, v2, 4, v74")
    A("s_lshr_b32 s48, s43, 1\ns_lshl_b32 s49, s42, 3\ns_add_u32 s48, s48, s49\ns_lshl_b32 s48, s48, 19")
    A("s_mov_b32 s50, 0")
    c = math.log2(math.e) / 16.0
    import struct
    cbits = struct.unpack("<I", struct.pack("<f", c))[0]
    A(f"s_mov_b32 s51, {cbits:#x}")
    A("A_loop:")
    KB = 192
    for tp in range(2):
        for u in range(8):
            A(f"buffer_load_dwordx4 {vr(KB+32*tp+4*u,4)}, v74, s[20:23], s48 offen offset:{tp*2048+u*64}")
    for i in range(16):
        A(f"s_mov_b32 m0, {i*1024}")
        A(f"s_add_u32 s47, s48, {2*i*512}")
        A(f"buffer_load_dwordx4 v6, s[24:27], s47 offen lds")
    for i in range(8): A(f"v_mov_b32 v{76+i}, 0")
    A("s_waitcnt vmcnt(0)")
    for tp in range(2):
        for u in range(8):
            A(f"{MF} {vr(76+4*tp,4)}, {vr(KB+32*tp+4*u,4)}, {vr(QB+4*u,4)}, {vr(76+4*tp,4)}")
    A("s_nop 15")
    A("v_max3_f32 v84, v76, v77, v78\nv_max3_f32 v84, v84, v79, v80\nv_max3_f32 v84, v84, v81, v82\nv_max3_f32 v84, v84, v83, v72")
    A("v_mov_b32 v85, v84\ns_nop 1\nv_permlane32_swap_b32 v84, v85\ns_nop 1\nv_max_f32 v84, v84, v85")
    A("v_mov_b32 v85, v84\ns_nop 1\nv_permlane16_swap_b32 v84, v85\ns_nop 1\nv_max_f32 v84, v84, v85")
    A("v_sub_f32 v86, v72, v84\nv_mul_f32 v86, s51, v86\nv_exp_f32 v86, v86\nv_mov_b32 v72, v84")
    A("v_mul_f32 v87, s51, v84")
    for i in range(8):
        A(f"v_fma_f32 v{76+i}, v{76+i}, s51, -v87")
    for i in range(8):
        A(f"v_exp_f32 v{76+i}, v{76+i}")
    A("s_nop 1")
    A("v_mul_f32 v73, v73, v86")
    for i in range(8): A(f"v_add_f32 v73, v73, v{76+i}")
    for j in range(4): A(f"v_cvt_pk_bf16_f32 v{88+j}, v{76+2*j}, v{76+2*j+1}")
    for i in range(64): A(f"v_mul_f32 v{QA+i}, v{QA+i}, v86")
    for mt in range(16):
        A(f"ds_read_b64_tr_b16 v[68:69], v67 offset:{mt*32}")
        A(f"ds_read_b64_tr_b16 v[70:71], v67 offset:{mt*32+4*512}")
        A("s_waitcnt lgkmcnt(0)")
        A(f"{MF} {vr(QA+4*mt,4)}, v[68:71], v[88:91], {vr(QA+4*mt,4)}")
    A("s_nop 15")
    A("s_add_u32 s48, s48, 16384\ns_add_u32 s50, s50, 1\ns_cmp_lt_u32 s50, 32\ns_cbranch_scc1 A_loop")
    A("v_mov_b32 v85, v73\ns_nop 1\nv_permlane32_swap_b32 v73, v85\ns_nop 1\nv_add_f32 v73, v73, v85")
    A("v_mov_b32 v85, v73\ns_nop 1\nv_permlane16_swap_b32 v73, v85\ns_nop 1\nv_add_f32 v73, v73, v85")
    A("v_rcp_f32 v73, v73\ns_nop 1")
    for i in range(64): A(f"v_mul_f32 v{QA+i}, v{QA+i}, v73")
    A("v_lshlrev_b32 v4, 13, v3\nv_lshl_add_u32 v4, v2, 3, v4")
    for mt in range(16):
        A(f"v_cvt_pk_bf16_f32 v{8+2*mt}, v{QA+4*mt}, v{QA+4*mt+1}")
        A(f"v_cvt_pk_bf16_f32 v{9+2*mt}, v{QA+4*mt+2}, v{QA+4*mt+3}")
        A(f"buffer_store_dwordx2 {vr(8+2*mt,2)}, v4, s[32:35], s46 offen offset:{mt*32}")
    A("s_waitcnt vmcnt(0)")
    A("A_end:\ns_endpgm")

def oproj_kernel(A):
    name = "oproj0_kernel"
    kernel_begin(A, name)
    A("s_cmp_ge_u32 s2, 336\ns_cbranch_scc1 B_end")
    A("s_load_dwordx4 s[4:7], s[0:1], 32")
    A("s_load_dwordx2 s[12:13], s[0:1], 56")
    A("s_mul_hi_u32 s40, s2, 0x24924925")
    A("s_mul_i32 s41, s40, 7\ns_sub_u32 s41, s2, s41")
    A("s_waitcnt lgkmcnt(0)")
    srd(A, 16, 4, W_BYTES); srd(A, 20, 6, X_BYTES); srd(A, 32, 12, WS_BYTES)
    A("v_and_b32 v1, 15, v0\nv_lshrrev_b32 v2, 4, v0")
    A("s_lshl_b32 s44, s40, 4\nv_add_u32 v3, s44, v1")
    A("v_lshlrev_b32 v4, 13, v3\nv_lshl_add_u32 v4, v2, 4, v4")
    A("v_lshrrev_b32 v5, 3, v0\nv_and_b32 v6, 7, v0\nv_lshlrev_b32 v6, 4, v6")
    A("v_mul_u32_u24 v5, 896, v5\nv_add_u32 v6, v5, v6")
    A("v_lshrrev_b32 v64, 2, v1\nv_and_b32 v65, 3, v1")
    A("v_lshl_add_u32 v66, v2, 3, v64\nv_lshlrev_b32 v66, 7, v66\nv_lshl_add_u32 v66, v65, 3, v66")
    for i in range(16): A(f"v_mov_b32 v{16+i}, 0")
    A("s_lshl_b32 s46, s41, 7")
    A("s_mov_b32 s48, 0\ns_mov_b32 s50, 0")
    A("B_loop:")
    A("buffer_load_dwordx4 v[8:11], v4, s[32:35], s48 offen")
    for i in range(4):
        A(f"s_mov_b32 m0, {i*1024}")
        A(f"s_add_u32 s47, s46, {8*i*896}")
        A("buffer_load_dwordx4 v6, s[16:19], s47 offen lds")
    A("s_waitcnt vmcnt(0)")
    for mt in range(4):
        A(f"ds_read_b64_tr_b16 v[68:69], v66 offset:{mt*32}")
        A(f"ds_read_b64_tr_b16 v[70:71], v66 offset:{mt*32+4*128}")
        A("s_waitcnt lgkmcnt(0)")
        A(f"{MF} {vr(16+4*mt,4)}, v[68:71], v[8:11], {vr(16+4*mt,4)}")
    A("s_nop 7")
    A(f"s_add_u32 s46, s46, {32*896}\ns_add_u32 s48, s48, 64\ns_add_u32 s50, s50, 1\ns_cmp_lt_u32 s50, 128\ns_cbranch_scc1 B_loop")
    A("s_nop 15")
    A("v_mul_u32_u24 v4, 896, v3\nv_lshl_add_u32 v4, v2, 3, v4")
    A("s_lshl_b32 s46, s41, 7")
    for mt in range(4):
        A(f"v_cvt_pk_bf16_f32 v{40+2*mt}, v{16+4*mt}, v{16+4*mt+1}")
        A(f"v_cvt_pk_bf16_f32 v{41+2*mt}, v{16+4*mt+2}, v{16+4*mt+3}")
        A(f"buffer_store_dwordx2 {vr(40+2*mt,2)}, v4, s[20:23], s46 offen offset:{mt*32}")
    A("s_waitcnt vmcnt(0)")
    A("B_end:\ns_endpgm")

def probe_kernel(A, flag, amp):
    name = "probe_kernel"
    kernel_begin(A, name)
    A("s_cmp_ge_u32 s2, 256\ns_cbranch_scc1 P_end")
    A("s_memrealtime s[30:31]")
    A("s_load_dwordx4 s[4:7], s[0:1], 8")
    A("v_lshlrev_b32 v2, 4, v0")
    A("s_waitcnt lgkmcnt(0)")
    srd(A, 12, 4, KV_BYTES); srd(A, 16, 6, KV_BYTES)
    A("s_lshl_b32 s24, s2, 17")
    for i in range(32):
        A(f"buffer_load_dwordx4 v[8:11], v2, s[12:15], s24 offen{flag}")
        A(f"buffer_load_dwordx4 v[12:15], v2, s[16:19], s24 offen{flag}")
        A("s_add_u32 s24, s24, 4096")
        A("s_waitcnt vmcnt(16)")
    A("s_waitcnt vmcnt(0)")
    if amp:
        A("s_memrealtime s[32:33]\ns_waitcnt lgkmcnt(0)")
        A(f"s_sub_u32 s34, s32, s30\ns_mul_i32 s34, s34, {amp+1}")
        A("P_spin:\ns_memrealtime s[32:33]\ns_waitcnt lgkmcnt(0)\ns_sub_u32 s35, s32, s30\ns_cmp_lt_u32 s35, s34\ns_cbranch_scc1 P_spin")
    A("P_end:\ns_endpgm")
def empty_kernel(A):
    kernel_begin(A, "empty_kernel")
    A("s_endpgm")

def gen(pre=(), probe_flag="", amp=0):
    A = Asm()
    A(HEADER)
    for p in pre:
        A(f"; @launch kernel={p}_kernel grid=(256,1,1) block=(256,1,1) lds=0")
    A("; @launch kernel=attn0_kernel grid=(768,1,1) block=(64,1,1) lds=16384")
    A("; @launch kernel=oproj0_kernel grid=(336,1,1) block=(64,1,1) lds=4096")
    A('.amdgcn_target "amdgcn-amd-amdhsa--gfx950"\n.text')
    attn_kernel(A); oproj_kernel(A)
    if "probe" in pre: probe_kernel(A, probe_flag, amp)
    if "empty" in pre: empty_kernel(A)
    A('.section .rodata,"a"\n.p2align 6')
    descriptor(A, "attn0_kernel", 256, 256)
    A(".p2align 6")
    descriptor(A, "oproj0_kernel", 96, 96)
    if "probe" in pre:
        A(".p2align 6"); descriptor(A, "probe_kernel", 32, 32)
    if "empty" in pre:
        A(".p2align 6"); descriptor(A, "empty_kernel", 8, 8)
    return A.text()
if __name__ == "__main__":
    open("v0.s", "w").write(gen())
    open("v0_probe_plain.s", "w").write(gen(("probe",), "", 10))
    open("v0_probe_nt.s", "w").write(gen(("probe",), " nt", 10))
    open("v0_empty1.s", "w").write(gen(("empty",)))
    open("v0_empty10.s", "w").write(gen(("empty",)*10))
```

```python
import re
def regs(spec):
    out = []
    if spec is None: return out
    if isinstance(spec, (list, tuple)):
        for s in spec: out += regs(s)
        return out
    m = re.fullmatch(r"([vas])\[(\d+):(\d+)\]", spec)
    if m: return [f"{m.group(1)}{i}" for i in range(int(m.group(2)), int(m.group(3)) + 1)]
    if re.fullmatch(r"[vas]\d+", spec) or spec in ("vcc", "m0", "exec"): return [spec]
    return []
class Ins:
    __slots__ = ("text", "kind", "rd", "wr", "srcc", "passes", "states")
    def __init__(self, text, kind, rd=(), wr=(), srcc=(), passes=0, states=1):
        self.text, self.kind, self.rd, self.wr, self.srcc, self.passes, self.states = text, kind, regs(rd), regs(wr), regs(srcc), passes, states
TRANS = ("v_exp_f32", "v_rcp_f32", "v_log_f32", "v_rsq_f32", "v_sqrt_f32")
def valu(op, dst, *src, extra_rd=(), extra_wr=()):
    kind = "trans" if op in TRANS else ("perm" if op.startswith("v_permlane") else ("rdlane" if op.startswith("v_readfirstlane") or op.startswith("v_readlane") else "valu"))
    rd = [s.lstrip("-") for s in src if isinstance(s, str)] + list(extra_rd)
    wr = [dst] + list(extra_wr)
    if op.startswith("v_permlane"): rd = rd + [dst]; wr = wr + [src[0]]
    if op.startswith("v_fmac") : rd = rd + [dst]
    return Ins(f"{op} {dst}, " + ", ".join(str(s) for s in src), kind, rd, wr)
def mfma32(d, a, b, c):
    return Ins(f"v_mfma_f32_32x32x16_bf16 {d}, {a}, {b}, {c}", "mfma", [a, b], [d], [c] if isinstance(c, str) else [], passes=8)
def dsread(op, dst, addr, off):
    return Ins(f"{op} {dst}, {addr} offset:{off}", "dsr", [addr], [dst])
def raw(text, kind="other", rd=(), wr=(), states=1):
    return Ins(text, kind, rd, wr, states=states)

class Stream:
    def __init__(self):
        self.out = []
        self.pos = 0
        self.lastw = {}
        self.lastc = {}
        self.laststore = {}
        self.ds_pending = []
        self.nops = 0
        self.nwait = 0
    def _emit(self, i):
        self.out.append(i)
        p = self.pos
        self.pos += i.states
        for r in i.wr:
            self.lastw[r] = (p, i)
        if i.kind == "mfma":
            for r in i.srcc: self.lastc[r] = (p, i.passes)
        if i.kind == "store":
            for r in i.rd: self.laststore[r] = p
    def need_states(self, i):
        need = 0
        def req(p, n):
            nonlocal need
            need = max(need, p + 1 + n - self.pos)
        isvalu = i.kind in ("valu", "trans", "perm", "rdlane")
        MD = {4: 8, 8: 12}; MC = {4: 6, 8: 10}; WARC = {4: 3, 8: 7}
        for r in set(i.rd) | set(i.srcc):
            if r not in self.lastw: continue
            p, w = self.lastw[r]
            wv = w.kind in ("valu", "trans", "perm", "rdlane")
            if w.kind == "mfma":
                if i.kind == "mfma":
                    if r in i.rd: req(p, MD[w.passes])
                    elif w.wr != i.srcc: req(p, MC[w.passes])
                else: req(p, MD[w.passes])
            elif wv:
                if r[0] in "va" and r != "vcc":
                    if i.kind == "mfma": req(p, 2)
                    if i.kind == "perm": req(p, 2)
                    if i.kind == "rdlane": req(p, 1)
                    if w.kind == "trans" and isvalu and i.kind != "trans": req(p, 1)
                    if w.kind == "trans" and not isvalu: req(p, 1)
                else:
                    if isvalu: req(p, 2)
                    if i.kind in ("store", "load", "dma"): req(p, 5)
            elif r == "m0" and i.kind == "dma": req(p, 1)
        for r in i.wr:
            if r in self.lastw:
                p, w = self.lastw[r]
                if w.kind == "mfma" and i.kind != "mfma": req(p, MD[w.passes])
                if w.kind == "mfma" and i.kind == "mfma" and not (w.wr == i.wr and i.srcc == i.wr): req(p, MC[w.passes])
            if isvalu and r in self.lastc:
                p, n = self.lastc[r]; req(p, WARC[n])
            if r in self.laststore: req(self.laststore[r], 2)
        return need
    def wait_ds_for(self, i):
        touched = set(i.rd) | set(i.srcc) | set(i.wr)
        idx = -1
        for k, s in enumerate(self.ds_pending):
            if s & touched: idx = k
        if idx >= 0:
            n = len(self.ds_pending) - 1 - idx
            n = min(n, 15)
            self._emit(Ins(f"s_waitcnt lgkmcnt({n})", "wait"))
            self.nwait += 1
            self.ds_pending = self.ds_pending[len(self.ds_pending) - n:] if n else []
    def wait_ds(self, n):
        if len(self.ds_pending) > n:
            self._emit(Ins(f"s_waitcnt lgkmcnt({n})", "wait"))
            self.nwait += 1
            self.ds_pending = self.ds_pending[len(self.ds_pending) - n:] if n else []
    def add(self, i):
        if isinstance(i, (list, tuple)):
            for x in i: self.add(x)
            return
        self.wait_ds_for(i)
        n = self.need_states(i)
        while n > 0:
            k = min(n, 16)
            self._emit(Ins(f"s_nop {k-1}", "nop", states=k))
            self.nops += k
            n -= k
        if i.kind in ("dsr", "dsw"):
            assert len(self.ds_pending) < 15 or True
            self.ds_pending.append(set(i.wr))
        self._emit(i)
    def text(self):
        return "\n".join(i.text for i in self.out)
```

```python
import sys, math, struct
sys.path.insert(0, "tools")
from asmlib import *
from sched import *
def fbits(x): return struct.unpack("<I", struct.pack("<f", x))[0]
CSC = math.log2(math.e) / 16.0
ML_OFF = 0x1600000
STAMP_OFF = 0x9000000

class P:
    NS = 10; WD = 44; LA = 5; NF = 8; stamps = False; kvflag = " nt"; stflag = " sc1"; touch_at = 40

def tile_seq():
    seq = [("X", 0), ("X", 1)]
    for c in range(7):
        if c >= 1 and c + 1 < 7: seq.append(("X", c + 1))
        seq += [("W", 2 * c), ("W", 2 * c + 1)]
    seq += [("K", i) for i in range(16)] + [("V", i) for i in range(16)] + [("O", i) for i in range(14)]
    return seq

def prologue(A, p, name):
    A("s_cmp_ge_u32 s2, 256\ns_cbranch_scc1 M_end")
    A("s_load_dwordx8 s[4:11], s[0:1], 0")
    A("s_load_dwordx2 s[12:13], s[0:1], 32")
    A("s_load_dwordx2 s[14:15], s[0:1], 56")
    if p.stamps: A("s_memrealtime s[96:97]")
    A("s_getpc_b64 s[60:61]")
    A("s_and_b32 s60, s60, 0xffffff00")
    A(f"s_mov_b32 s62, CODE_END-{name}\ns_mov_b32 s63, 0x20000")
    A("v_lshrrev_b32 v1, 6, v0")
    A("v_and_b32 v2, 63, v0")
    A("v_readfirstlane_b32 s45, v1")
    A("s_lshr_b32 s46, s2, 3")
    A("s_lshl_b32 s47, s46, 2\ns_add_u32 s47, s47, s45")
    A("s_mul_i32 s47, s47, 640")
    A("v_lshlrev_b32 v3, 7, v2")
    A("s_mov_b64 exec, 31")
    A("buffer_load_dword v4, v3, s[60:63], s47 offen")
    A("s_mov_b64 exec, -1")
    A("s_and_b32 s40, s2, 7")
    A("s_lshr_b32 s41, s46, 2")
    A("s_bfe_u32 s42, s46, 0x10001")
    A("s_and_b32 s43, s46, 1")
    A("s_lshl_b32 s44, s40, 1\ns_add_u32 s44, s44, s43")
    A("s_cmp_lg_u32 s45, 0\ns_cbranch_scc1 M_compute")

def loader(A, p, seq):
    A("v_lshrrev_b32 v5, 3, v2\nv_mul_u32_u24 v5, 896, v5")
    A("v_and_b32 v6, 7, v2\nv_lshrrev_b32 v7, 4, v2")
    A("v_xor_b32 v32, v6, v7")
    A("v_lshl_add_u32 v8, v32, 4, v5")
    A("v_xor_b32 v9, 64, v8")
    A("v_add_u32 v10, 12288, v8\nv_add_u32 v11, 18432, v9\nv_add_u32 v9, 6144, v9")
    A("v_lshrrev_b32 v33, 5, v2\nv_and_b32 v34, 31, v2")
    A("v_lshlrev_b32 v35, 2, v33\nv_xor_b32 v35, v34, v35\nv_lshlrev_b32 v35, 4, v35")
    A("v_lshl_add_u32 v12, v33, 13, v35")
    A("v_xor_b32 v13, 128, v12")
    A("v_add_u32 v14, 30720, v12\nv_add_u32 v15, 46080, v13\nv_add_u32 v13, 15360, v13")
    A("s_and_b32 s48, s46, 3\ns_lshl_b32 s48, s48, 1\ns_add_u32 s48, s48, s41")
    A("s_cmp_ge_u32 s48, 7\ns_cselect_b32 s49, 7, 0\ns_sub_u32 s48, s48, s49")
    A("s_lshl_b32 s50, s48, 7")
    A("s_lshl_b32 s51, s48, 19")
    A("s_mul_i32 s52, s41, 86016")
    A("s_lshl_b32 s53, s44, 9\ns_lshl_b32 s49, s42, 18\ns_add_u32 s53, s53, s49")
    A("s_xor_b32 s54, s53, 0x40000")
    A("s_waitcnt lgkmcnt(0)")
    srd(A, 16, 4, X_BYTES); srd(A, 28, 10, W_BYTES)
    late = []
    def L(s): late.append(s)
    for d, b, n in ((20, 6, KV_BYTES), (24, 8, KV_BYTES), (32, 12, W_BYTES), (36, 14, WS_BYTES)):
        L(f"s_mov_b32 s{d}, s{b}\ns_mov_b32 s{d+1}, s{b+1}\ns_mov_b32 s{d+2}, {n}\ns_mov_b32 s{d+3}, 0x20000")
    L("v_xor_b32 v36, v34, v33\nv_lshlrev_b32 v36, 4, v36\nv_lshl_add_u32 v16, v33, 9, v36")
    for i in range(1, 8): L(f"v_xor_b32 v{16+i}, {i*32}, v16")
    L("v_lshl_add_u32 v24, v33, 9, v35\nv_xor_b32 v25, 128, v24")
    L("v_and_b32 v36, 1, v7\nv_lshlrev_b32 v36, 2, v36\nv_xor_b32 v36, v6, v36\nv_lshl_add_u32 v28, v36, 4, v5")
    for j in range(1, 4): L(f"v_add_u32 v{28+j}, {j*6144}, v28")
    L("s_lshl_b32 s55, s41, 3\ns_add_u32 s55, s55, s40\ns_lshl_b32 s55, s55, 19\ns_lshl_b32 s49, s42, 18\ns_add_u32 s55, s55, s49")
    L("s_mul_i32 s56, s44, 229376")
    L("s_lshl_b32 s57, s41, 1\ns_add_u32 s57, s57, s42\ns_mul_i32 s57, s57, 14336\ns_add_u32 s57, s57, s56")
    if p.stamps:
        L("v_mov_b32 v40, 0\nv_mov_b32 v41, 0\nv_mov_b32 v42, 0\nv_mov_b32 v43, 0")
    ops = [-1]
    nbar = 0
    last_of = {}
    groups = []
    for ti, (ty, i) in enumerate(seq):
        for gi in range(3 if ty == "X" else 4): groups.append((ti, ty, i, gi))
    pend_stamp = []
    def stamp(idx, which):
        if not p.stamps: return
        flush_stamp()
        A("s_memrealtime s[98:99]")
        pend_stamp.append((idx, which))
    def flush_stamp():
        if pend_stamp:
            idx, which = pend_stamp.pop()
            A("s_waitcnt lgkmcnt(0)")
            A(f"s_sub_u32 s98, s98, s96")
            A(f"v_writelane_b32 v{40 + 2*which + (idx >> 6)}, s98, {idx & 63}")
    def barriers(maxout):
        nonlocal nbar
        while nbar < len(seq) and nbar in last_of and len(ops) - 1 - last_of[nbar] >= maxout:
            stamp(nbar, 0)
            A("s_barrier")
            stamp(nbar, 1)
            nbar += 1
    for n, (ti, ty, i, gi) in enumerate(groups):
        assert ti - p.NS <= nbar - 4 or ti < p.NS, ("slot reuse", ti, nbar)
        slot = ti % p.NS
        A(f"s_mov_b32 m0, {slot*16384 + gi*4096}")
        if ty == "X":
            if gi == 0: A("s_add_u32 s58, s52, s50")
            else: A("s_add_u32 s58, s58, 28672")
            for j in range(4): A(f"buffer_load_dwordx4 v{8+j}, s[16:19], s58 offen offset:{j*1024} lds")
            if gi == 2: A("s_add_u32 s50, s50, 128\ns_cmp_eq_u32 s50, 896\ns_cselect_b32 s50, 0, s50")
        elif ty == "W":
            if gi == 0: A(f"s_add_u32 s58, s{53 + (i & 1)}, s51")
            else: A("s_add_u32 s58, s58, 65536")
            for j in range(4): A(f"buffer_load_dwordx4 v{12+j}, s[28:31], s58 offen offset:{j*1024} lds")
            if gi == 3 and (i & 1): A("s_add_u32 s51, s51, 0x80000\ns_cmp_eq_u32 s51, 0x380000\ns_cselect_b32 s51, 0, s51")
        elif ty == "K":
            A(f"s_add_u32 s58, s55, {i*16384 + gi*4096}")
            for j in range(4): A(f"buffer_load_dwordx4 v{16 + (4*gi+j) % 8}, s[20:23], s58 offen offset:{j*1024}{p.kvflag} lds")
        elif ty == "V":
            A(f"s_add_u32 s58, s55, {i*16384 + gi*4096}")
            for j in range(4): A(f"buffer_load_dwordx4 v{24 + (j & 1)}, s[24:27], s58 offen offset:{j*1024}{p.kvflag} lds")
        else:
            A(f"s_add_u32 s58, s56, {(i >> 1)*128 + ((i & 1)*128 + gi*32)*896}")
            for j in range(4): A(f"buffer_load_dwordx4 v{28+j}, s[32:35], s58 offen offset:{j*1024} lds")
        ops += [ti] * 4
        if gi == (2 if ty == "X" else 3): last_of[ti] = len(ops) - 1
        if n == 9:
            for s in late: A(s)
        if ti == p.touch_at and gi == 3:
            A("buffer_load_dword v4, v3, s[32:35], s57 offen")
            A("s_add_u32 s57, s57, 6144")
            A("buffer_load_dword v4, v3, s[32:35], s57 offen")
            ops += [-1, -1]
        if len(ops) > p.WD:
            A(f"s_waitcnt vmcnt({p.WD})")
            barriers(p.WD)
    while nbar < len(seq):
        k = len(ops) - 1 - last_of[nbar]
        A(f"s_waitcnt vmcnt({k})")
        barriers(k)
    if p.stamps:
        flush_stamp()
        A(f"s_lshl_b32 s58, s2, 10\ns_add_u32 s58, s58, {STAMP_OFF}")
        A("v_lshlrev_b32 v5, 2, v2")
        A("v_writelane_b32 v41, s96, 63")
        for k in range(4): A(f"buffer_store_dword v{40+k}, v5, s[36:39], s58 offen offset:{k*256}")
    A("s_endpgm")

def compute(A, p, seq):
    A("M_compute:")
    S = Stream()
    V = lambda op, d, *s: S.add(valu(op, d, *s))
    R = lambda t, **k: S.add(raw(t, **k))
    R("s_sub_u32 s45, s45, 1")
    V("v_and_b32", "v5", 31, "v2"); V("v_lshrrev_b32", "v6", 5, "v2")
    V("v_bfe_u32", "v7", "v2", 2, 2); V("v_and_b32", "v8", 3, "v2"); V("v_bfe_u32", "v9", "v2", 4, 1)
    XA = [10, 11, 12, 13]; WA = [14, 15, 16, 17]; KA = list(range(18, 26)); VA = [10, 11, 12, 13]; OA = [14, 15]
    VM, VL, VMC, VST = 26, 27, 28, 29
    T0 = 30
    R("s_lshl_b32 s48, s45, 12"); R("s_lshl_b32 s49, s42, 6")
    V("v_bfe_u32", "v30", "v2", 1, 3); V("v_xor_b32", "v30", "v30", "v6"); V("v_lshlrev_b32", "v30", 4, "v30")
    V("v_lshl_add_u32", "v30", "v5", 7, "v30"); V("v_add_u32", "v30", "s48", "v30"); V("v_xor_b32", "v10", "s49", "v30")
    for t in range(1, 4): V("v_xor_b32", f"v{10+t}", t * 32, "v10")
    V("v_and_b32", "v30", 1, "v8"); V("v_lshlrev_b32", "v30", 4, "v30"); V("v_lshrrev_b32", "v31", 1, "v8")
    V("v_lshl_add_u32", "v31", "v31", 3, "v30"); V("v_lshl_add_u32", "v31", "v9", 5, "v31")
    V("v_lshl_add_u32", "v30", "v6", 3, "v7"); V("v_lshlrev_b32", "v30", 9, "v30"); V("v_lshl_add_u32", "v30", "v7", 6, "v30")
    V("v_add_u32", "v14", "v30", "v31")
    for q in range(1, 4): V("v_xor_b32", f"v{14+q}", q * 64, "v14")
    V("v_and_b32", "v30", 15, "v2"); V("v_xor_b32", "v30", "v30", "v6"); V("v_lshlrev_b32", "v30", 4, "v30")
    V("v_lshl_add_u32", "v18", "v5", 9, "v30")
    for u in range(1, 8): V("v_xor_b32", f"v{18+u}", u * 32, "v18")
    V("v_mov_b32", f"v{VM}", "0xff800000"); V("v_mov_b32", f"v{VL}", 0)
    V("v_lshlrev_b32", f"v{VST}", 4, "v2")
    R(f"s_mov_b32 s59, {fbits(CSC):#x}")
    R("s_waitcnt lgkmcnt(0)")
    R("s_mov_b32 s36, s14"); R("s_mov_b32 s37, s15"); R(f"s_mov_b32 s38, {WS_BYTES}"); R("s_mov_b32 s39, 0x20000")
    R("s_mul_i32 s50, s41, 3"); R("s_add_u32 s50, s50, s45"); R("s_mul_i32 s50, s50, 896")
    R("s_lshl_b32 s51, s44, 1"); R("s_add_u32 s51, s51, s42"); R("s_add_u32 s50, s50, s51"); R("s_lshl_b32 s50, s50, 10")
    R("s_lshl_b32 s52, s41, 4"); R("s_add_u32 s52, s52, s44"); R("s_mul_i32 s52, s52, 1536")
    R("s_lshl_b32 s53, s45, 9"); R("s_add_u32 s52, s52, s53"); R("s_lshl_b32 s53, s42, 3"); R("s_add_u32 s52, s52, s53")
    R(f"s_add_u32 s52, s52, {ML_OFF}")
    win = {r: 0 for r in XA + WA + KA}
    def rd(op, dst, areg, ti, off):
        a = (ti % p.NS) * 16384 + off
        w = a >> 16
        if win[areg] != w:
            V("v_add_u32", f"v{areg}", hex(((w - win[areg]) << 16) & 0xffffffff), f"v{areg}")
            win[areg] = w
        S.add(dsread(op, dst, f"v{areg}", a & 0xffff))
    FR = 256 - 4 * p.NF
    QA = lambda mt: 64 + 16 * mt
    QF = lambda u: 192 + 4 * u
    XF = lambda c, t: 128 + 16 * (c % 3) + 4 * t
    SB = lambda k: (("a", 16 * k) if k < 8 else ("v", 64 + 16 * (k - 8)))
    OB = lambda mt: (("v", 192 + 16 * mt) if mt < 4 else ("a", 128 + 16 * (mt - 4)))
    PB = lambda k, t: 48 + 8 * (k & 1) + 4 * t
    TM = 32
    OF = lambda u: 64 + 4 * u
    AC = lambda np_, nt: 128 + 32 * (np_ & 1) + 16 * nt
    steps = []
    fill = {}
    first = {}
    for ti, (ty, i) in enumerate(seq):
        if ty == "X": continue
        first[(ty, i)] = len(steps)
        if ty == "W":
            for tt in range(2):
                for mt in range(8):
                    d = vr(QA(mt), 16)
                    rs = [("ds_read_b64_tr_b16", 2*j, 2, WA[mt & 3], (16*tt + 4*j)*512 + (mt >> 2)*256) for j in range(2)]
                    steps.append(dict(ti=ti, rs=rs, d=d, b=ar(XF(i >> 1, 2*(i & 1) + tt), 4), c=(0 if i == 0 and tt == 0 else d)))
        elif ty == "K":
            f, r0 = SB(i); d = vr(r0, 16, f)
            for u in range(16):
                steps.append(dict(ti=ti, rs=[("ds_read_b128", 0, 4, KA[u & 7], (u >> 3)*256)], d=d, b=vr(QF(u), 4), c=(0 if u == 0 else d)))
        elif ty == "V":
            for t in range(2):
                for mt in range(8):
                    f, r0 = OB(mt); d = vr(r0, 16, f)
                    rs = [("ds_read_b64_tr_b16", 2*j, 2, VA[mt & 3], (16*t + 8*j)*512 + (mt >> 2)*256) for j in range(2)]
                    steps.append(dict(ti=ti, rs=rs, d=d, b=vr(PB(i, t), 4), c=(0 if i == 0 and t == 0 else d)))
        else:
            for t in range(8):
                for nt in range(2):
                    d = vr(AC(i >> 1, nt), 16)
                    rs = [("ds_read_b64_tr_b16", 2*j, 2, OA[nt], (16*t + 8*j)*128) for j in range(2)]
                    steps.append(dict(ti=ti, rs=rs, d=d, b=vr(OF(8*(i & 1) + t), 4), c=(0 if (i & 1) == 0 and t == 0 else d)))
    N = len(steps)
    def spread(ins, g0, g1):
        cost = [2 if x.kind == "trans" else 1 for x in ins]
        tot = sum(cost); acc = 0
        for x, c in zip(ins, cost):
            g = g0 + min(g1 - g0 - 1, int(acc * (g1 - g0) / tot))
            fill.setdefault(g, []).append(x); acc += c
    cvt = lambda d, a, b: valu("v_cvt_pk_bf16_f32", d, a, b)
    k0 = first[("K", 0)]
    for u in range(16):
        mt = u >> 1
        g = max(k0 - 8 + mt + 3, k0 - 5 + u) if u >= 1 else k0 - 5
        g = min(g, k0 + u - 2)
        for j in range(4):
            r = QA(mt) + 8 * (u & 1) + 2 * j
            fill.setdefault(g, []).append(cvt(f"v{QF(u)+j}", f"v{r}", f"v{r+1}"))
    def maxops(k):
        f, r0 = SB(k); o = []
        for j in range(8):
            if f == "a":
                o += [valu("v_accvgpr_read_b32", f"v{TM+2*j}", f"a{r0+2*j}"), valu("v_accvgpr_read_b32", f"v{TM+2*j+1}", f"a{r0+2*j+1}")]
                o.append(valu("v_max3_f32", f"v{VM}", f"v{TM+2*j}", f"v{TM+2*j+1}", f"v{VM}"))
            else:
                o.append(valu("v_max3_f32", f"v{VM}", f"v{r0+2*j}", f"v{r0+2*j+1}", f"v{VM}"))
        return o
    for k in range(15):
        s0 = first[("K", k + 1)]
        spread(maxops(k), s0 + 5, s0 + 15)
    adr = [valu("v_lshl_add_u32", "v30", "v6", 2, "v7"), valu("v_lshlrev_b32", "v10", 9, "v30"),
           valu("v_lshl_add_u32", "v10", "v7", 6, "v10"), valu("v_lshl_add_u32", "v10", "v9", 5, "v10"),
           valu("v_lshl_add_u32", "v10", "v8", 3, "v10")]
    adr += [valu("v_xor_b32", f"v{10+q}", q * 64, "v10") for q in range(1, 4)]
    adr += [valu("v_lshl_add_u32", "v14", "v30", 7, "v31"), valu("v_lshrrev_b32", "v30", 1, "v7"),
            valu("v_lshl_add_u32", "v14", "v30", 6, "v14"), valu("v_xor_b32", "v15", 64, "v14")]
    s2_ = first[("K", 2)]
    spread(adr, s2_, s2_ + 5)
    reset_win_at = s2_
    def smx(k):
        f, r0 = SB(k); o = []
        src = (lambda j: f"v{TM+j}") if f == "a" else (lambda j: f"v{r0+j}")
        st = []
        for j in range(16):
            a = []
            if f == "a": a.append(valu("v_accvgpr_read_b32", src(j), f"a{r0+j}"))
            a.append(valu("v_fma_f32", src(j), src(j), "s59", f"-v{VMC}"))
            a.append(valu("v_exp_f32", src(j), src(j)))
            st.append(a)
        for j in range(18):
            if j < 16: o += st[j]
            if j >= 2:
                o.append(valu("v_add_f32", f"v{VL}", f"v{VL}", src(j - 2)))
                if (j - 2) & 1: o.append(cvt(f"v{PB(k, 0) + ((j-2) >> 1)}", src(j - 3), src(j - 2)))
        return o
    v0_ = first[("V", 0)]
    tail = maxops(15) + [valu("v_mov_b32", "v30", f"v{VM}"), valu("v_permlane32_swap_b32", f"v{VM}", "v30"),
                         valu("v_max_f32", f"v{VM}", f"v{VM}", "v30"), valu("v_mul_f32", f"v{VMC}", "s59", f"v{VM}")] + smx(0)
    fill.setdefault(v0_ - 1, []).extend(tail)
    for k in range(1, 16):
        s0 = first[("V", k - 1)]
        spread(smx(k), s0, s0 + 15)
    s0 = first[("V", 15)]
    ml = [valu("v_mov_b32", "v30", f"v{VL}"), valu("v_lshlrev_b32", "v16", 4, "v5"), valu("v_mov_b32", "v32", f"v{VMC}"),
          valu("v_permlane32_swap_b32", f"v{VL}", "v30"), valu("v_add_f32", "v33", f"v{VL}", "v30"),
          raw(f"buffer_store_dwordx2 v[32:33], v16, s[36:39], s52 offen{p.stflag}", "store", rd=["v[32:33]", "v16"])]
    fill.setdefault(s0 + 1, []).extend(ml[:3]); fill.setdefault(s0 + 2, []).extend(ml[3:5]); fill.setdefault(s0 + 3, []).extend(ml[5:])
    o0 = first[("O", 0)]
    for u in range(8):
        mt = u >> 1
        g = min(max(o0 - 8 + mt + 4, o0 - 4 + u), o0 + 2 * u - 2)
        for j in range(4):
            r = OB(mt)[1] + 8 * (u & 1) + 2 * j
            fill.setdefault(g, []).append(cvt(f"v{OF(u)+j}", f"v{r}", f"v{r+1}"))
    oc = []
    for u in range(8, 16):
        mt = u >> 1
        for j in range(4):
            r = OB(mt)[1] + 8 * (u & 1) + 2 * j
            t = TM + 2 * ((4 * u + j) % 8)
            oc += [valu("v_accvgpr_read_b32", f"v{t}", f"a{r}"), valu("v_accvgpr_read_b32", f"v{t+1}", f"a{r+1}"), cvt(f"v{OF(u)+j}", f"v{t}", f"v{t+1}")]
    spread(oc, o0 + 4, o0 + 28)
    def outops(np_):
        o = []
        for nt in range(2):
            for tp in range(2):
                img = 2 * nt + tp
                st = 32 + 16 * (np_ & 1) + 4 * img
                for j in range(4):
                    r = AC(np_, nt) + 8 * tp + 2 * j
                    o.append(cvt(f"v{st+j}", f"v{r}", f"v{r+1}"))
                o.append(raw(f"s_add_u32 s51, s50, {(np_*4 + img)*32768}"))
                o.append(raw(f"buffer_store_dwordx4 {vr(st,4)}, v{VST}, s[36:39], s51 offen{p.stflag}", "store", rd=[vr(st, 4), f"v{VST}"]))
        return o
    for np_ in range(6):
        s0 = first[("O", 2 * np_ + 2)]
        spread(outops(np_), s0 + 4, s0 + 14)
    fill.setdefault(N - 1, []).extend(outops(6))
    nb = 0
    frag = lambda n: FR + 4 * (n % p.NF)
    for n in range(-p.LA, N):
        if n >= 0:
            st = steps[n]
            if n % 2 == 0 and n + 1 < N:
                S.wait_ds_for(raw("", rd=[ar(frag(n + 1), 4)]))
            S.add(mfma32(st["d"], ar(frag(n), 4), st["b"], st["c"]))
        m = n + p.LA
        if m < N:
            st = steps[m]
            while nb <= st["ti"]:
                R("s_barrier")
                if seq[nb][0] == "X":
                    for t in range(4): rd("ds_read_b128", ar(XF(seq[nb][1], t), 4), XA[t], nb, 0)
                nb += 1
            for op, o, w, areg, off in st["rs"]:
                rd(op, ar(frag(m) + o, w), areg, st["ti"], off)
        if n == reset_win_at:
            for r in VA + OA: win[r] = 0
        for x in fill.get(n, []): S.add(x)
    assert nb == len(seq)
    A(S.text())
    sys.stderr.write(f"compute: {len(S.out)} instrs, nop states {S.nops}, waits {S.nwait}\n")

def reduce_kernel(A, p):
    name = "gqa_reduce_kernel"
    kernel_begin(A, name)
    A("s_cmp_ge_u32 s2, 168\ns_cbranch_scc1 R_end")
    A("s_load_dwordx2 s[4:5], s[0:1], 40\ns_load_dwordx2 s[6:7], s[0:1], 56")
    S = Stream()
    V = lambda op, d, *s: S.add(valu(op, d, *s))
    R = lambda t, **k: S.add(raw(t, **k))
    V("v_lshrrev_b32", "v1", 6, "v0"); V("v_and_b32", "v2", 63, "v0"); V("v_and_b32", "v5", 31, "v0")
    V("v_readfirstlane_b32", "s45", "v1")
    R("s_mul_hi_u32 s40, s2, 0x24924925")
    R("s_mul_i32 s41, s40, 7"); R("s_sub_u32 s41, s2, s41")
    R("s_mul_hi_u32 s42, s40, 0x55555556")
    R("s_mul_i32 s43, s42, 3"); R("s_sub_u32 s43, s40, s43")
    V("v_lshlrev_b32", "v3", 4, "v2"); V("v_lshlrev_b32", "v4", 4, "v5")
    R("s_lshl_b32 s46, s2, 2"); R("s_add_u32 s46, s46, s45"); R("s_lshl_b32 s46, s46, 15")
    R("s_mul_i32 s47, s42, 24576"); R("s_lshl_b32 s48, s43, 9"); R("s_add_u32 s47, s47, s48"); R(f"s_add_u32 s47, s47, {ML_OFF}")
    R("s_waitcnt lgkmcnt(0)")
    for t in ("s_mov_b32 s8, s6", "s_mov_b32 s9, s7", f"s_mov_b32 s10, {WS_BYTES}", "s_mov_b32 s11, 0x20000",
              "s_mov_b32 s12, s4", "s_mov_b32 s13, s5", f"s_mov_b32 s14, {X_BYTES}", "s_mov_b32 s15, 0x20000"): R(t)
    ML = 16; PD = 80
    for h in range(16):
        R(f"buffer_load_dwordx4 {vr(ML+4*h,4)}, v4, s[8:11], s47 offen offset:{(h&1)*1536}", kind="load", rd=["v4"])
        if h & 1: R("s_add_u32 s47, s47, 3072")
    for q in range(32):
        R(f"buffer_load_dwordx4 {vr(PD+4*q,4)}, v3, s[8:11], s46 offen offset:{(q&3)*1024} nt", kind="load", rd=["v3"])
        if (q & 3) == 3: R("s_add_u32 s46, s46, 4096")
    R("s_lshl_b32 s48, s40, 5")
    V("v_add_u32", "v6", "s48", "v5"); V("v_mul_u32_u24", "v6", 896, "v6"); V("v_lshrrev_b32", "v7", 5, "v2")
    V("v_lshl_add_u32", "v6", "v7", 4, "v6")
    R("s_lshl_b32 s49, s41, 7"); R("s_lshl_b32 s48, s45, 5"); R("s_add_u32 s49, s49, s48")
    R("s_mov_b32 s50, 0xffff0000")
    for h in range(16):
        if h % 4 == 0: R(f"s_waitcnt vmcnt({32 + 12 - h})")
        m0_, l0, m1, l1 = (f"v{ML+4*h+k}" for k in range(4))
        V("v_max_f32", "v7", m0_, m1); V("v_sub_f32", m0_, m0_, "v7"); V("v_sub_f32", m1, m1, "v7")
        V("v_exp_f32", m0_, m0_); V("v_exp_f32", m1, m1)
        V("v_mul_f32", l0, l0, m0_); V("v_fma_f32", l0, l1, m1, l0); V("v_rcp_f32", l0, l0)
        V("v_mul_f32", m0_, m0_, l0); V("v_mul_f32", m1, m1, l0)
    for q in range(32):
        if q % 2 == 0: R(f"s_waitcnt vmcnt({30 - q})")
        w = f"v{ML + 4*(q >> 1) + 2*(q & 1)}"
        for j in range(4):
            d = f"v{PD+4*q+j}"
            V("v_lshlrev_b32", "v7", 16, d); V("v_and_b32", d, "s50", d)
            if q == 0:
                V("v_mul_f32", f"v{8+2*j}", "v7", w); V("v_mul_f32", f"v{9+2*j}", d, w)
            else:
                V("v_fmac_f32", f"v{8+2*j}", "v7", w); V("v_fmac_f32", f"v{9+2*j}", d, w)
    for j in range(4): V("v_cvt_pk_bf16_f32", f"v{16+j}", f"v{8+2*j}", f"v{9+2*j}")
    R("buffer_store_dwordx4 v[16:19], v6, s[12:15], s49 offen", kind="store", rd=["v[16:19]", "v6"])
    A(S.text())
    A("R_end:\ns_endpgm")

def gen(p):
    A = Asm()
    A(HEADER)
    name = "gqa_main_kernel"
    A(f"; @launch kernel={name} grid=(256,1,1) block=(256,1,1) lds={p.NS*16384}")
    A("; @launch kernel=gqa_reduce_kernel grid=(168,1,1) block=(256,1,1) lds=0")
    A('.amdgcn_target "amdgcn-amd-amdhsa--gfx950"\n.text')
    seq = tile_seq()
    kernel_begin(A, name)
    prologue(A, p, name)
    loader(A, p, seq)
    A(".p2align 6")
    compute(A, p, seq)
    A("M_end:\ns_endpgm")
    reduce_kernel(A, p)
    A("CODE_END:")
    A('.section .rodata,"a"\n.p2align 6')
    descriptor(A, name, 512, 256)
    A(".p2align 6")
    descriptor(A, "gqa_reduce_kernel", 208, 208)
    return A.text()
if __name__ == "__main__":
    p = P()
    out = sys.argv[1]
    for kv in sys.argv[2:]:
        k, v = kv.split("=")
        cur = getattr(P, k)
        setattr(p, k, (v == "1") if isinstance(cur, bool) else (int(v) if isinstance(cur, int) else (" " + v.replace("+", " ") if v else "")))
    open(out, "w").write(gen(p))
```
